```python
import torch

def _softmax(x, axis=-1):
    return torch.softmax(x, dim=axis)

def _gelu(x):
    return torch.nn.functional.gelu(x, approximate='tanh')

def _silu(x):
    return torch.nn.functional.silu(x)

def _sigmoid(x):
    return torch.sigmoid(x)

def _layernorm(x, axis=-1, eps=1e-05):
    m = x.mean(dim=axis, keepdim=True)
    v = x.var(dim=axis, keepdim=True, unbiased=False)
    return (x - m) / torch.sqrt(v + eps)

def _scatter_add(tgt, idx, src, axis=0):
    return tgt.clone().index_add_(axis, idx, src)

def _segment_sum(src, seg, n):
    out = torch.zeros((n,) + src.shape[1:], dtype=src.dtype)
    return out.index_add_(0, seg, src)

def _pad(x, pw):
    flat = tuple((v for pair in reversed(pw) for v in pair))
    return torch.nn.functional.pad(x, flat)
kernel_name = 'adaLN_cond__sliding_block_cached__swiglu_ffn__decode'

def setup_inputs():

    _w = lambda a: (lambda t: t.to(torch.bfloat16) if t.is_floating_point() else t)(torch.as_tensor(a))

    def _A_setup():
        B, Sq, D = (1, 1, 448)
        Hq, Hkv, Sk, Dh = (16, 8, 16384, 256)
        assert Hq % Hkv == 0, (Hq, Hkv)
        return {'x': _w((lambda *s: torch.randn(*s, dtype=torch.bfloat16) * 0.1)(B, Sq, D)), 'k_cache': _w((lambda *s: torch.randn(*s, dtype=torch.bfloat16) * 0.8)(B, Hkv, Sk, Dh)), 'v_cache': _w((lambda *s: torch.randn(*s, dtype=torch.bfloat16) * 1.6)(B, Hkv, Sk, Dh)), 'wq': _w((lambda *s: torch.randn(*s, dtype=torch.bfloat16) * 0.8)(D, Hq * Dh) * D ** (-0.5)), 'wo': _w((lambda *s: torch.randn(*s, dtype=torch.bfloat16) * 1.6)(Hq * Dh, D) * (Hq * Dh) ** (-0.5))}
    _A_in = _A_setup()

    def _B_setup():
        B, S, D, F = (1, 1, 448, 1792)
        return {'x': _w((lambda *s: torch.randn(*s, dtype=torch.bfloat16) * 0.1)(B, S, D)), 'w_gate': _w((lambda *s: torch.randn(*s, dtype=torch.bfloat16) * 0.2)(D, F)), 'w_up': _w((lambda *s: torch.randn(*s, dtype=torch.bfloat16) * 0.2)(D, F)), 'w_down': _w((lambda *s: torch.randn(*s, dtype=torch.bfloat16) * 0.2)(F, D))}
    _B_in = _B_setup()
    return {'A_x': _A_in['x'], 'A_k_cache': _A_in['k_cache'], 'A_v_cache': _A_in['v_cache'], 'A_wq': _A_in['wq'], 'A_wo': _A_in['wo'], 'B_x': _B_in['x'], 'B_w_gate': _B_in['w_gate'], 'B_w_up': _B_in['w_up'], 'B_w_down': _B_in['w_down'], 'c': _w((lambda *s: torch.randn(*s, dtype=torch.bfloat16) * 0.8)(1, 448) * 8.0), 'w_mod': _w((lambda *s: torch.randn(*s, dtype=torch.bfloat16) * 0.8)(448, 6 * 448) * 448 ** (-0.5) * 8.0)}

def reference(A_x, A_k_cache, A_v_cache, A_wq, A_wo, B_x, B_w_gate, B_w_up, B_w_down, c, w_mod):

    def _A_ref(x, k_cache, v_cache, wq, wo):
        B, Sq, D = x.shape
        Hq, Dh = (16, 256)
        Hkv, Sk = (k_cache.shape[1], k_cache.shape[2])
        W = min(4096, max(256, Sk // 4))
        rep = Hq // Hkv
        q = (lambda x, *d: x.permute(*d))((x @ wq).reshape(B, Sq, Hq, Dh), 0, 2, 1, 3)
        k = (lambda x, n, axis: torch.repeat_interleave(x, n, dim=axis))(k_cache[:, :, Sk - W:, :], rep, axis=1)
        v = (lambda x, n, axis: torch.repeat_interleave(x, n, dim=axis))(v_cache[:, :, Sk - W:, :], rep, axis=1)
        scores = torch.einsum('bhqd,bhkd->bhqk', q, k) * Dh ** (-0.5)
        p = _softmax(scores, axis=-1)
        o = torch.einsum('bhqk,bhkd->bhqd', p, v)
        return (lambda x, *d: x.permute(*d))(o, 0, 2, 1, 3).reshape(B, Sq, Hq * Dh) @ wo

    def _B_ref(x, w_gate, w_up, w_down):
        g = _silu(x @ w_gate)
        u = x @ w_up
        return g * u @ w_down
    x = A_x
    mod = (_silu(c) @ w_mod).reshape(c.shape[0], 6, 1, -1)
    sa, ca, ga, sb, cb, gb = (mod[:, 0].clone(), mod[:, 1].clone(), mod[:, 2].clone(), mod[:, 3].clone(), mod[:, 4].clone(), mod[:, 5].clone())
    h = _layernorm(x, axis=-1) * (1 + ca) + sa
    x = x + ga * _A_ref(h, A_k_cache, A_v_cache, A_wq, A_wo)
    h = _layernorm(x, axis=-1) * (1 + cb) + sb
    x = x + gb * _B_ref(h, B_w_gate, B_w_up, B_w_down)
    return x
```

```python
KN = 'adaLN_cond__sliding_block_cached__swiglu_ffn__decode_kernel'
class Asm:
    def __init__(self):
        self.l = []
    def __call__(self, s=''):
        for line in s.split('\n'):
            self.l.append(line)
    def text(self):
        return '\n'.join(self.l) + '\n'

def header(a, grid, block, lds, name=KN):
    a(f'; @launch grid=({grid},1,1) block=({block},1,1) lds={lds}')
    a('.amdgcn_target "amdgcn-amd-amdhsa--gfx950"')
    a('.text')
    a(f'.globl {name}')
    a('.p2align 8')
    a(f'.type {name},@function')
    a(f'{name}:')

def footer(a, vgpr, sgpr=102, accum=None, name=KN):
    if accum is None: accum = min(256, (vgpr + 3) // 4 * 4)
    a('.section .rodata,"a"')
    a('.p2align 6')
    a(f'.amdhsa_kernel {name}')
    a(f'  .amdhsa_next_free_vgpr {vgpr}')
    a(f'  .amdhsa_next_free_sgpr {sgpr}')
    a(f'  .amdhsa_accum_offset {accum}')
    a('  .amdhsa_group_segment_fixed_size 0')
    a('  .amdhsa_kernarg_size 112')
    a('  .amdhsa_user_sgpr_count 2')
    a('  .amdhsa_user_sgpr_kernarg_segment_ptr 1')
    a('  .amdhsa_system_sgpr_workgroup_id_x 1')
    a('  .amdhsa_float_denorm_mode_32 3')
    a('.end_amdhsa_kernel')

STAMP_OFF = 128 << 20
def stamp(a, idx, base=70):
    a(f's_memrealtime s[{base+2*idx}:{base+2*idx+1}]')

def dump_stamps(a, n, ws_lo, wg='s2', wave_s='s3', base=70, vt=0, srd=60):
    a('s_waitcnt lgkmcnt(0)')
    a(f's_add_u32 s{srd}, s{ws_lo}, {STAMP_OFF}')
    a(f's_addc_u32 s{srd+1}, s{ws_lo+1}, 0')
    a(f's_mov_b32 s{srd+2}, 0x100000')
    a(f's_mov_b32 s{srd+3}, 0x20000')
    a(f's_lshl_b32 s{srd+4}, {wg}, 4')
    a(f's_add_u32 s{srd+4}, s{srd+4}, {wave_s}')
    a(f's_lshl_b32 s{srd+4}, s{srd+4}, 7')
    a('s_mov_b64 exec, 1')
    a(f'v_mov_b32 v{vt+2}, s{srd+4}')
    for i in range(n):
        a(f'v_mov_b32 v{vt}, s{base+2*i}')
        a(f'v_mov_b32 v{vt+1}, s{base+2*i+1}')
        a(f'buffer_store_dwordx2 v[{vt}:{vt+1}], v{vt+2}, s[{srd}:{srd+3}], 0 offen offset:{8*i}')
        a('s_nop 1')
    a('s_waitcnt vmcnt(0)')
```

```python
import re

TRANS = ('v_exp_', 'v_log_', 'v_rcp_', 'v_rsq_', 'v_sqrt_', 'v_sin_', 'v_cos_')
REG_RE = re.compile(r'(?<![\w.])([vsa])(\d+)(?![\w])|(?<![\w.])([vsa])\[(\d+):(\d+)\]|(?<![\w.])(vcc|exec|m0|scc)(?:_lo|_hi)?(?![\w])')


def regs_of(tok):
    out = set()
    for m in REG_RE.finditer(tok):
        if m.group(1):
            out.add((m.group(1), int(m.group(2))))
        elif m.group(3):
            for i in range(int(m.group(4)), int(m.group(5)) + 1):
                out.add((m.group(3), i))
        else:
            out.add((m.group(6), 0))
    return out


class Ins:
    def __init__(self, text):
        self.text = text
        t = text.split(';')[0].strip()
        self.label = None
        self.op = ''
        self.is_ins = False
        if not t or t.startswith('.'):
            return
        if t.endswith(':'):
            self.label = t[:-1]
            return
        self.is_ins = True
        parts = t.split(None, 1)
        self.op = op = parts[0]
        rest = parts[1] if len(parts) > 1 else ''
        ops, depth, cur = [], 0, ''
        for ch in rest:
            if ch in '[(':
                depth += 1
            if ch in '])':
                depth -= 1
            if ch == ',' and depth == 0:
                ops.append(cur.strip()); cur = ''
            else:
                cur += ch
        if cur.strip():
            ops.append(cur.strip())
        self.mods = ''
        if ops:
            sp = ops[-1].split(None, 1)
            if len(sp) > 1 and not ops[-1].startswith('hwreg'):
                ops[-1] = sp[0]; self.mods = sp[1]
        self.ops = ops
        self.mfma = op.startswith('v_mfma')
        self.valu = op.startswith('v_') and not self.mfma
        self.trans = op.startswith(TRANS)
        self.dpp = ('_dpp' in op) or bool(re.search(r'row_|quad_perm', self.mods))
        self.permlane = op.startswith('v_permlane')
        self.readlane = op.startswith('v_readlane') or op.startswith('v_readfirstlane')
        self.vmem = op.startswith('buffer_') or op.startswith('global_') or op.startswith('flat_')
        self.ds = op.startswith('ds_')
        self.salu = op.startswith('s_')
        self.lds_dma = self.vmem and re.search(r'\blds\b', self.mods) is not None
        self.branch = op.startswith('s_cbranch') or op == 's_branch'
        self.target = ops[0] if self.branch else None
        self.uncond = op in ('s_branch', 's_endpgm')
        self.nop = int(ops[0], 0) + 1 if op == 's_nop' else 1
        R = [regs_of(o) for o in ops]
        self.w, self.r = set(), set()
        self.srcc = set()
        self.store_data = set()
        if self.mfma:
            self.w = R[0]; self.r = R[1] | R[2] | R[3]; self.srcc = R[3]; self.ab = R[1] | R[2]
        elif self.valu:
            if self.permlane and 'swap' in op:
                self.w = R[0] | R[1]; self.r = R[0] | R[1]
            else:
                self.w = set(R[0])
                k = 1
                if re.match(r'v_(add|sub|subrev|addc|subb)_co_', op) or op.startswith('v_div_scale') or op.startswith('v_mad_u64'):
                    self.w |= R[1]; k = 2
                for x in R[k:]:
                    self.r |= x
                if op.startswith('v_fmac') or op.startswith('v_dot2c') or self.dpp or op.startswith('v_writelane') or 'd16' in op:
                    self.r |= R[0]
                if op.startswith('v_cmpx'):
                    self.w |= {('exec', 0)}
                if op.startswith('v_div_fmas'):
                    self.r |= {('vcc', 0)}
        elif self.vmem:
            isstore = '_store_' in op or ('atomic' in op)
            if isstore:
                for x in R:
                    self.r |= x
                if 'x4' in op or 'x3' in op:
                    self.store_data = R[0] if op.startswith('buffer_') else R[1]
            elif self.lds_dma:
                for x in R:
                    self.r |= x
                self.r |= {('m0', 0)}
            else:
                self.w = R[0]
                for x in R[1:]:
                    self.r |= x
        elif self.ds:
            if op.startswith('ds_read') or '_rtn' in op or 'permute' in op or 'swizzle' in op:
                self.w = R[0]
                for x in R[1:]:
                    self.r |= x
            else:
                for x in R:
                    self.r |= x
        else:
            if op.startswith('s_cmp') or op.startswith('s_bitcmp') or self.branch or op in ('s_waitcnt', 's_nop', 's_barrier', 's_endpgm', 's_setprio', 's_sleep'):
                for x in R:
                    self.r |= x
            elif R:
                self.w = set(R[0])
                for x in R[1:]:
                    self.r |= x
                if 'saveexec' in op:
                    self.w |= {('exec', 0)}


def vg(s):
    return {x for x in s if x[0] in 'va'}


def sg(s):
    return {x for x in s if x[0] == 's' or x[0] == 'vcc'}


def need(p, c):
    n = 0
    if p.valu:
        wv = vg(p.w)
        if c.mfma and wv & c.r: n = max(n, 2)
        if c.valu and c.dpp and wv & c.r: n = max(n, 2)
        if c.permlane and wv & c.r: n = max(n, 2)
        if c.readlane and wv & c.r: n = max(n, 1)
        if p.trans and (c.valu and not c.trans) and wv & c.r: n = max(n, 1)
        if p.trans and (c.vmem or c.ds) and wv & c.r: n = max(n, 1)
        if ('op_sel' in p.mods or 'dst_sel' in p.mods) and c.valu and wv & (c.r | c.w): n = max(n, 1)
        ws = sg(p.w)
        if ws:
            if c.valu and ws & c.r: n = max(n, 4 if c.readlane or c.op.startswith('v_writelane') or c.op.startswith('v_div_fmas') else 2)
            if c.vmem and ws & c.r: n = max(n, 5)
        if ('exec', 0) in p.w:
            if c.valu or c.mfma: n = max(n, 5)
    if p.mfma:
        big = '32x32' in p.op
        if c.mfma:
            if p.w & c.ab: n = max(n, 12 if big else 8)
            if p.w & c.srcc and not (p.w == c.srcc): n = max(n, 10 if big else 6)
            if p.w & c.w and not (p.w & c.srcc): n = max(n, 12 if big else 8)
        elif c.valu or c.vmem or c.ds:
            if p.w & (c.r | c.w): n = max(n, 12 if big else 8)
        if c.valu and p.srcc & c.w: n = max(n, 7 if big else 3)
    if p.salu and ('m0', 0) in p.w and c.lds_dma: n = max(n, 1)
    if p.store_data and (c.valu or c.mfma or c.vmem or c.ds) and p.store_data & c.w: n = max(n, 2)
    return n


MAXD = 13


def pad(lines, verbose=False):
    prog = [Ins(l) for l in lines]
    out = []
    npad = 0
    labels = {}
    for i, x in enumerate(prog):
        if x.label: labels[x.label] = i
    jumps = {}
    for i, x in enumerate(prog):
        if x.is_ins and x.branch and x.target in labels:
            jumps.setdefault(labels[x.target], []).append(i)
    extra = [0] * len(prog)

    def worst(i):
        c = prog[i]
        best = 0
        seen = {}
        stack = [(i, 0)]
        while stack:
            k, d = stack.pop()
            if d >= MAXD: continue
            if seen.get(k, 99) <= d: continue
            seen[k] = d
            preds = []
            if k > 0:
                q = prog[k - 1]
                if not (q.is_ins and q.uncond): preds.append(k - 1)
            if prog[k].label:
                preds += jumps.get(k, [])
            for pk in preds:
                p = prog[pk]
                if p.is_ins:
                    nn = need(p, c)
                    if nn - d > best: best = nn - d
                    stack.append((pk, d + p.nop + extra[pk]))
                else:
                    stack.append((pk, d))
        return best

    for i, x in enumerate(prog):
        if x.is_ins and not x.salu:
            extra[i] = worst(i)
    for i, x in enumerate(prog):
        e = extra[i]
        if e > 0:
            npad += 1
            out.append(f's_nop {e - 1}')
            if verbose: print('pad', e, 'before', x.text)
        out.append(x.text)
    return out, npad
```

```python
import sys, os
sys.path.insert(0, os.path.dirname(os.path.abspath(__file__)))
from asmlib import Asm, KN, STAMP_OFF
import hazard

MODA = 0x1000
QP = 0x6000
ML = 0x16000
MODB = 0x18000
YREC = 0x1C000
FREC = 0x24000
OREC = 0x40000
WS_SIZE = 0xC0000
TAGC = 0x9E3779B1
KREG = 20480
QL = 0; RQ = 1024; MX = 2048; LW = 2080; CNT = 2112; RY = 2304; OW = 4096; KB = 12288
LDS_SIZE = 98304
RA = 0; RB = 2048; ST = 4096; DUM = 4608; X2 = 5120; GU = 8192
TIMEOUT = 20000

C_LOG2E_N = 0xbfb8aa3b
C_LLO_N = 0xb2a57060
C_LN2 = 0x3f317218
C_SC = 0x3db8aa3b
C_I448 = 0x3b124925
C_EPS = 0x3727c5ac


class G:
    def __init__(self, dev=False, opt=None):
        self.a = Asm()
        self.dev = dev
        self.o = opt or {}
        self.nl = 0

    def __call__(self, s):
        for line in s.strip('\n').split('\n'):
            self.a(line.strip())

    def lab(self, p):
        self.nl += 1
        return f'L_{p}{self.nl}'

    def stamp(self, i):
        if self.dev:
            self(f's_memrealtime s[{70 + 2 * i}:{71 + 2 * i}]')

    def end(self):
        if self.dev:
            self('s_branch L_dump')
        else:
            self('s_endpgm')

    def masks(self, M, t, sp=56):
        self(f'''
        s_mov_b64 s[{sp}:{sp+1}], 0xffff
        v_lshlrev_b32 v{t}, 4, v0
        v_lshlrev_b64 v[{M}:{M+1}], v{t}, s[{sp}:{sp+1}]
        v_bfe_i32 v{t}, v0, 2, 1
        v_and_b32 v{M+2}, v{M}, v{t}
        v_and_b32 v{M+3}, v{M+1}, v{t}
        v_xor_b32 v{M}, v{M}, v{M+2}
        v_xor_b32 v{M+1}, v{M+1}, v{M+3}
        ''')

    def srd_ws(self):
        self(f'''
        s_mov_b32 s42, {WS_SIZE}
        s_mov_b32 s43, 0x20000
        ''')

    def tagregs(self):
        self(f'''
        s_add_u32 s34, s34, {TAGC}
        s_and_b32 s36, s34, 0xff
        s_bfe_u32 s37, s34, 0x80008
        s_bfe_u32 s38, s34, 0x80010
        s_lshr_b32 s39, s34, 24
        ''')

    def rnd(self, d, s):
        self(f'''
        v_cvt_pk_bf16_f32 v{d}, v{s}, v{s}
        v_lshlrev_b32 v{d}, 16, v{d}
        ''')

    def silu_acc(self, d, x, t):
        self(f'''
        v_mul_f32 v{t}, s58, v{x}
        v_fma_f32 v{t+1}, v{x}, s58, -v{t}
        v_min_f32 v{t}, s61, v{t}
        v_fma_f32 v{t+1}, v{x}, s59, v{t+1}
        v_exp_f32 v{t}, v{t}
        v_mul_f32 v{t+1}, s60, v{t+1}
        v_fma_f32 v{t}, v{t}, v{t+1}, v{t}
        v_add_f32 v{t}, 1.0, v{t}
        v_rcp_f32 v{t+1}, v{t}
        s_nop 0
        v_mul_f32 v{t+2}, v{x}, v{t+1}
        v_fma_f32 v{t}, -v{t+2}, v{t}, v{x}
        v_fma_f32 v{t+2}, v{t}, v{t+1}, v{t+2}
        v_cvt_pk_bf16_f32 v{d}, v{t+2}, v{t+2}
        ''')

    def p01(self, p0, p1, src):
        self(f'''
        v_cvt_pk_bf16_f32 v{p1}, v{src}, v{src}
        v_cvt_pk_bf16_f32 v{p0}, v{src}, v{src}
        ''')
        self.p01b(p0, p1)

    def p01b(self, p0, p1):
        self(f'''
        v_mov_b32_dpp v{p0}, v{p1} row_shr:4 row_mask:0xf bank_mask:0xa
        v_mov_b32_dpp v{p1}, v{p1} row_shl:4 row_mask:0xf bank_mask:0x5
        ''')

    def gemv(self, R, P, M, A, Ws, Ds, waits=None):
        def ands(t):
            a = t & 3
            b = A + 4 * (t & 1)
            for j in range(4):
                self(f'v_and_b32_dpp v{b+j}, v{P[t >> 2]}, v{M+j} quad_perm:[{a},{a},{a},{a}] row_mask:0xf bank_mask:0xf')
        ands(0)
        for t in range(R):
            if t + 1 < R:
                ands(t + 1)
            if waits and waits.get(t) is not None:
                self(f's_waitcnt vmcnt({waits[t]})')
            b = A + 4 * (t & 1)
            for W, D in zip(Ws, Ds):
                c = '0' if t == 0 else f'v[{D}:{D+3}]'
                self(f'v_mfma_f32_16x16x32_bf16 v[{D}:{D+3}], v[{b}:{b+3}], v[{W+4*t}:{W+4*t+3}], {c}')

    def red1(self, S, D):
        self(f'''
        v_permlane32_swap_b32 v{D}, v{D+1}
        v_permlane32_swap_b32 v{D+2}, v{D+3}
        v_add_f32_dpp v{S}, v{D+1}, v{D} row_ror:8 row_mask:0xf bank_mask:0x3
        v_add_f32_dpp v{S}, v{D+2}, v{D+3} row_ror:8 row_mask:0xf bank_mask:0xc
        ''')

    def colmap(self, d, t):
        self(f'''
        v_and_b32 v{d}, 7, v0
        v_bfe_u32 v{t}, v0, 4, 1
        v_lshl_or_b32 v{d}, v{d}, 1, v{t}
        v_bfe_u32 v{t}, v0, 3, 1
        v_lshl_or_b32 v{d}, v{d}, 1, v{t}
        v_lshrrev_b32 v{t}, 5, v0
        v_lshl_or_b32 v{d}, v{d}, 1, v{t}
        ''')

    def x4comb(self, d, u):
        self(f'''
        v_permlane32_swap_b32 v{u}, v{u+2}
        v_permlane32_swap_b32 v{u+1}, v{u+3}
        v_add_f32 v{u}, v{u}, v{u+2}
        v_add_f32 v{u+1}, v{u+1}, v{u+3}
        v_permlane16_swap_b32 v{u}, v{u+1}
        v_add_f32 v{d}, v{u}, v{u+1}
        ''')

    def rowvoff(self, d, t, rowb):
        self(f'''
        v_bfe_u32 v{d}, v0, 3, 1
        v_lshrrev_b32 v{t}, 4, v0
        v_lshl_or_b32 v{d}, v{d}, 5, v{t}
        v_and_b32 v{t}, 7, v0
        v_lshlrev_b32 v{t}, 4, v{t}
        s_movk_i32 s56, {rowb}
        v_mad_u32_u24 v{d}, v{d}, s56, v{t}
        ''')

    def wave_sum2(self, a, b):
        for c in ('row_shr:1 row_mask:0xf', 'row_shr:2 row_mask:0xf', 'row_shr:4 row_mask:0xf', 'row_shr:8 row_mask:0xf',
                  'row_bcast:15 row_mask:0xa', 'row_bcast:31 row_mask:0xc'):
            self(f'v_add_f32_dpp v{a}, v{a}, v{a} {c} bank_mask:0xf')
            self(f'v_add_f32_dpp v{b}, v{b}, v{b} {c} bank_mask:0xf')

    def poll_begin(self, name):
        L = self.lab(name)
        self(f's_movk_i32 s35, {TIMEOUT}')
        self(f'{L}:')
        return L

    def poll_end(self, L):
        self(f'''
        s_cbranch_vccz {L}_ok
        s_sub_u32 s35, s35, 1
        s_cbranch_scc0 {L}
        {L}_ok:
        ''')

    def ln_tail(self, S, Q, x, ln, t):
        self(f'''
        v_mul_f32 v{t}, s62, {S}
        v_mul_f32 v{t+1}, s62, {Q}
        v_fma_f32 v{t+1}, -v{t}, v{t}, v{t+1}
        v_max_f32 v{t+1}, 0, v{t+1}
        v_cvt_pk_bf16_f32 v{t}, v{t}, v{t+1}
        v_and_b32 v{t+1}, s63, v{t}
        v_lshlrev_b32 v{t}, 16, v{t}
        v_add_f32 v{t+1}, s64, v{t+1}
        v_sub_f32 v{t}, v{x}, v{t}
        v_cvt_pk_bf16_f32 v{t}, v{t}, v{t+1}
        v_and_b32 v{t+1}, s63, v{t}
        v_sqrt_f32 v{t+1}, v{t+1}
        v_lshlrev_b32 v{t}, 16, v{t}
        v_cvt_pk_bf16_f32 v{t+1}, v{t+1}, v{t+1}
        v_lshlrev_b32 v{t+1}, 16, v{t+1}
        v_rcp_f32 v{t+1}, v{t+1}
        s_nop 0
        v_mul_f32 v{t}, v{t}, v{t+1}
        ''')
        self.rnd(ln, t)

    def prefetch_code(self, t):
        L = self.lab('pc')
        self(f'''
        s_getpc_b64 s[60:61]
        {L}:
        s_sub_u32 s60, s60, {L}-{KN}
        s_subb_u32 s61, s61, 0
        v_lshlrev_b32 v{t}, 7, v0
        ''')
        n = self.o.get('code_kb', 16) // 8
        for i in range(n):
            self(f'''
            v_add_u32 v{t+1}, {i * 8192}, v{t}
            v_min_u32 v{t+1}, L_code_end-{KN}-4, v{t+1}
            global_load_dword v{200+i}, v{t+1}, s[60:61]
            ''')

    def prologue(self):
        self.stamp(0)
        if self.dev:
            for i in range(1, 12):
                self(f's_mov_b64 s[{70+2*i}:{71+2*i}], 0')
        self(f'''
        s_cmp_ge_u32 s2, 256
        s_cbranch_scc1 L_end
        s_load_dwordx16 s[4:19], s[0:1], 0
        s_load_dwordx8 s[20:27], s[0:1], 64
        s_load_dwordx4 s[28:31], s[0:1], 96
        v_readfirstlane_b32 s3, v0
        v_and_b32 v0, 63, v0
        s_lshr_b32 s3, s3, 6
        s_cmp_lt_u32 s2, 32
        s_cbranch_scc1 L_service
        s_and_b32 s32, s2, 7
        s_lshr_b32 s33, s2, 3
        s_sub_u32 s33, s33, 4
        s_cmp_lt_u32 s3, 4
        s_cbranch_scc1 L_front
        ''')

    def stream(self):
        VQ, VK, VV, D, M = 32, 64, 160, 20, 16
        AOP, ACC, PP, T0 = 64, 104, 112, 122
        self(f'''
        L_stream:
        s_setprio 1
        s_sub_u32 s56, s3, 4
        s_lshl_b32 s57, s33, 2
        s_add_u32 s57, s57, s56
        s_mul_i32 s58, s57, 37
        s_sub_i32 s59, s57, 56
        s_max_i32 s59, s59, 0
        s_min_i32 s59, s59, 8
        s_mul_i32 s59, s59, 6
        s_sub_u32 s58, s58, s59
        s_lshr_b32 s60, s33, 1
        s_cmp_eq_u32 s60, 7
        s_cselect_b32 s61, 31, 37
        s_add_u32 s58, s58, 12288
        s_lshl_b32 s58, s58, 9
        s_lshl_b32 s60, s32, 23
        s_add_u32 s62, s58, s60
        s_lshl_b32 s60, s61, 9
        s_add_u32 s46, s62, s60
        s_mov_b32 s47, 0x20000
        s_mov_b32 s50, s46
        s_mov_b32 s51, 0x20000
        s_add_u32 s63, s62, 4096
        s_add_u32 s64, s62, 8192
        s_add_u32 s65, s62, 12288
        s_add_u32 s66, s62, 16384
        s_mul_i32 s67, s56, {KREG}
        s_add_u32 s67, s67, {KB}
        s_mov_b32 m0, s67
        v_and_b32 v1, 31, v0
        v_lshrrev_b32 v10, 5, v0
        v_lshlrev_b32 v11, 2, v10
        v_xor_b32 v1, v1, v11
        v_lshlrev_b32 v1, 4, v1
        v_lshl_or_b32 v2, v10, 9, v1
        v_xor_b32 v3, 0x80, v2
        v_xor_b32 v4, 16, v2
        v_xor_b32 v5, 0x90, v2
        v_xor_b32 v6, 32, v2
        v_xor_b32 v7, 0xa0, v2
        v_xor_b32 v8, 48, v2
        v_xor_b32 v9, 0xb0, v2
        v_lshrrev_b32 v20, 4, v0
        v_and_b32 v21, 15, v0
        v_lshlrev_b32 v10, 9, v20
        v_lshl_or_b32 v10, v21, 4, v10
        s_barrier
        s_waitcnt lgkmcnt(0)
        ''')
        self.stamp(1)
        self('''
        s_mov_b64 s[44:45], s[6:7]
        s_mov_b64 s[48:49], s[8:9]
        ''')
        for m in range(19):
            if m and m % 4 == 0:
                self(f's_add_u32 m0, s67, {(m >> 2) * 4096}')
            self(f'buffer_load_dwordx4 v{2 + (m & 7)}, s[44:47], s{62 + (m >> 2)} offen offset:{(m & 3) * 1024} nt lds')
            if m == 0:
                self('s_load_dword s34, s[30:31], 0')
        self('s_setprio 0')
        for gm in range(10):
            for h in range(2):
                r = VV + 8 * gm + 4 * h
                self(f'buffer_load_dwordx4 v[{r}:{r+3}], v10, s[48:51], s{62 + (gm >> 1)} offen offset:{(gm & 1) * 2048 + h * 256} nt')
        self.stamp(2)
        self(f'''
        v_lshrrev_b32 v22, 2, v21
        v_and_b32 v23, 3, v21
        v_lshl_add_u32 v22, v23, 2, v22
        v_xor_b32 v23, v20, v21
        v_lshlrev_b32 v23, 4, v23
        v_lshl_add_u32 v22, v22, 9, v23
        v_add_u32 v11, s67, v22
        v_xor_b32 v12, 64, v11
        v_xor_b32 v13, 0x80, v11
        v_xor_b32 v14, 0xc0, v11
        v_bfe_u32 v22, v0, 3, 1
        v_lshlrev_b32 v23, 4, v20
        v_lshl_add_u32 v15, v22, 9, v23
        v_lshlrev_b32 v1, 4, v22
        s_lshl_b32 s57, s56, 2
        v_add_u32 v3, s57, v1
        s_sub_i32 s57, s61, 28
        v_cmp_gt_i32 s[52:53], s57, v20
        s_sub_i32 s57, s61, 32
        v_cmp_gt_i32 s[54:55], s57, v20
        s_sub_i32 s57, s61, 36
        v_cmp_gt_i32 s[68:69], s57, v20
        v_lshrrev_b32 v22, 5, v0
        v_lshlrev_b32 v22, 10, v22
        v_lshl_or_b32 v22, v21, 5, v22
        v_bfe_u32 v23, v0, 4, 1
        v_lshl_or_b32 v22, v23, 4, v22
        s_lshl_b32 s57, s56, 11
        v_add_u32 v4, s57, v22
        s_lshl_b32 s57, s56, 9
        v_lshlrev_b32 v5, 3, v0
        v_add_u32 v6, s57, v5
        s_lshl_b32 s57, s32, 1
        s_lshr_b32 s58, s56, 1
        s_add_u32 s57, s57, s58
        s_lshl_b32 s57, s57, 5
        s_add_u32 s57, s57, s33
        s_lshl_b32 s57, s57, 10
        s_and_b32 s58, s56, 1
        s_lshl_b32 s58, s58, 9
        s_add_u32 s57, s57, s58
        s_add_u32 s67, s57, {OREC}
        s_mov_b64 s[40:41], s[30:31]
        ''')
        self.srd_ws()
        self.masks(M, 22)
        self(f'''
        s_mov_b32 s62, 0xffff0000
        s_mov_b32 s63, {C_SC}
        s_movk_i32 s64, 0xff
        v_mov_b32 v2, 0xff7fffff
        s_waitcnt vmcnt(20) lgkmcnt(0)
        s_add_u32 s34, s34, {TAGC}
        v_and_b32 v7, 1, v0
        v_lshlrev_b32 v7, 4, v7
        v_lshrrev_b32 v7, v7, s34
        v_lshrrev_b32 v8, 8, v7
        ''')
        self.stamp(3)
        for s in range(8):
            for T in range(3):
                r = VK + 12 * s + 4 * T
                self(f'ds_read_b128 v[{r}:{r+3}], v{11 + (s & 3)} offset:{(s >> 2) * 256 + T * 8192}')
            if s == 3:
                self('s_waitcnt lgkmcnt(3)')
        self('s_waitcnt lgkmcnt(7)')
        self('s_barrier')
        self.stamp(4)
        for s in range(8):
            self(f'ds_read_b128 v[{VQ+4*s}:{VQ+4*s+3}], v15 offset:{QL + s * 64}')
        for s in range(8):
            self(f's_waitcnt lgkmcnt({7 - s})')
            for T in range(3):
                r = VK + 12 * s + 4 * T
                c = '0' if s == 0 else f'v[{D+4*T}:{D+4*T+3}]'
                self(f'v_mfma_f32_16x16x32_bf16 v[{D+4*T}:{D+4*T+3}], v[{r}:{r+3}], v[{VQ+4*s}:{VQ+4*s+3}], {c}')
        S = 32
        for k in range(5):
            self(f'v_cvt_pk_bf16_f32 v{S+2*k+1}, v{D+2*k}, v{D+2*k+1}')
        for k in range(5):
            self(f'v_lshlrev_b32 v{S+2*k}, 16, v{S+2*k+1}')
            self(f'v_and_b32 v{S+2*k+1}, s62, v{S+2*k+1}')
        self(f'''
        v_cndmask_b32 v{S+7}, v2, v{S+7}, s[52:53]
        v_cndmask_b32 v{S+8}, v2, v{S+8}, s[54:55]
        v_cndmask_b32 v{S+9}, v2, v{S+9}, s[68:69]
        v_max3_f32 v44, v{S}, v{S+1}, v{S+2}
        v_max3_f32 v45, v{S+3}, v{S+4}, v{S+5}
        v_max3_f32 v44, v44, v{S+6}, v{S+7}
        v_max3_f32 v45, v45, v{S+8}, v{S+9}
        v_max_f32 v44, v44, v45
        v_mov_b32 v45, v44
        v_permlane16_swap_b32 v44, v45
        v_max_f32 v44, v44, v45
        v_mov_b32 v45, v44
        v_permlane32_swap_b32 v44, v45
        v_max_f32 v44, v44, v45
        ds_write_b32 v3, v44 offset:{MX}
        s_waitcnt lgkmcnt(0)
        s_barrier
        ds_read_b128 v[44:47], v1 offset:{MX}
        s_waitcnt lgkmcnt(0)
        v_max3_f32 v44, v44, v45, v46
        v_max_f32 v44, v44, v47
        ''')
        for k in range(10):
            self(f'v_sub_f32 v{S+k}, v{S+k}, v44')
        for k in range(10):
            self(f'v_mul_f32 v{S+k}, s63, v{S+k}')
        for k in range(10):
            self(f'v_exp_f32 v{S+k}, v{S+k}')
        for k in range(10):
            self(f'v_cvt_pk_bf16_f32 v{PP+k}, v{S+k}, v{S+k}')
        for k in range(2):
            for j in range(4):
                self(f'v_and_b32 v{AOP+4*k+j}, v{PP+k}, v{M+j}')
        self(f'''
        v_add_f32 v44, v{S}, v{S+1}
        v_add_f32 v45, v{S+2}, v{S+3}
        v_add_f32 v46, v{S+4}, v{S+5}
        v_add_f32 v47, v{S+6}, v{S+7}
        v_add_f32 v48, v{S+8}, v{S+9}
        v_add_f32 v44, v44, v45
        v_add_f32 v46, v46, v47
        v_add_f32 v44, v44, v48
        v_add_f32 v44, v44, v46
        v_mov_b32 v45, v44
        v_permlane16_swap_b32 v44, v45
        v_add_f32 v44, v44, v45
        v_mov_b32 v45, v44
        v_permlane32_swap_b32 v44, v45
        v_add_f32 v44, v44, v45
        ds_write_b32 v3, v44 offset:{LW}
        ''')
        for k in range(2, 10):
            for j in range(4):
                self(f'v_and_b32 v{AOP+4*k+j}, v{PP+k}, v{M+j}')
        self.stamp(5)
        for gm in range(10):
            for h in range(2):
                self(f's_waitcnt vmcnt({19 - 2 * gm - h})')
                r = VV + 8 * gm + 4 * h
                c = '0' if gm == 0 else f'v[{ACC+4*h}:{ACC+4*h+3}]'
                self(f'v_mfma_f32_16x16x32_bf16 v[{ACC+4*h}:{ACC+4*h+3}], v[{AOP+4*gm}:{AOP+4*gm+3}], v[{r}:{r+3}], {c}')
        self.stamp(6)
        self(f'''
        ds_write_b128 v4, v[{ACC}:{ACC+3}] offset:{OW}
        ds_write_b128 v4, v[{ACC+4}:{ACC+7}] offset:{OW + 512}
        s_waitcnt lgkmcnt(0)
        s_barrier
        ds_read_b64 v[20:21], v6 offset:{OW}
        ds_read_b64 v[22:23], v6 offset:{OW + 2048}
        ds_read_b64 v[24:25], v6 offset:{OW + 4096}
        ds_read_b64 v[26:27], v6 offset:{OW + 6144}
        s_waitcnt lgkmcnt(2)
        v_pk_add_f32 v[20:21], v[20:21], v[22:23]
        s_waitcnt lgkmcnt(0)
        v_pk_add_f32 v[24:25], v[24:25], v[26:27]
        v_pk_add_f32 v[20:21], v[20:21], v[24:25]
        v_bfi_b32 v20, s64, v7, v20
        v_bfi_b32 v21, s64, v8, v21
        buffer_store_dwordx2 v[20:21], v5, s[40:43], s67 offen sc1
        ''')
        self.stamp(7)
        self.end()

    def mlpub(self):
        self(f'''
        v_and_b32 v1, 1, v0
        v_lshlrev_b32 v2, 4, v1
        v_lshlrev_b32 v1, 9, v1
        s_lshl_b32 s67, s32, 10
        s_lshl_b32 s68, s33, 4
        s_add_u32 s67, s67, s68
        s_add_u32 s67, s67, {ML}
        s_barrier
        ds_read_b128 v[64:67], v2 offset:{MX}
        ds_read_b128 v[68:71], v2 offset:{LW}
        s_waitcnt lgkmcnt(1)
        v_max3_f32 v64, v64, v65, v66
        v_mov_b32 v65, s34
        v_max_f32 v64, v64, v67
        s_waitcnt lgkmcnt(0)
        v_pk_add_f32 v[68:69], v[68:69], v[70:71]
        v_mov_b32 v67, s34
        v_add_f32 v66, v68, v69
        s_mov_b64 exec, 3
        buffer_store_dwordx4 v[64:67], v1, s[40:43], s67 offen sc1
        s_mov_b64 exec, -1
        ''')

    def front(self):
        M, A, D, W = 16, 20, 28, 32
        self(f'''
        L_front:
        s_setprio 3
        v_mov_b32 v1, {CNT}
        v_mov_b32 v2, 0
        ds_write_b32 v1, v2
        ''')
        self.srd_ws()
        self(f'''
        s_cmp_lt_u32 s33, 16
        s_cbranch_scc1 L_fq
        ''')
        self.prefetch_code(4)
        self('''
        s_waitcnt lgkmcnt(0)
        s_barrier
        s_load_dword s34, s[30:31], 0
        s_mov_b64 s[40:41], s[30:31]
        ''')
        self.masks(M, 1)
        self('s_waitcnt lgkmcnt(0)')
        self.tagregs()
        self('s_branch L_fgather')
        self(f'''
        L_fq:
        s_and_b32 s56, s33, 7
        s_lshr_b32 s57, s33, 3
        s_mul_i32 s58, s57, 224
        s_mul_i32 s59, s3, 56
        s_add_u32 s58, s58, s59
        s_lshl_b32 s59, s58, 13
        s_lshl_b32 s60, s32, 10
        s_add_u32 s59, s59, s60
        s_lshl_b32 s60, s56, 7
        s_add_u32 s59, s59, s60
        s_movk_i32 s46, 896
        s_mov_b32 s47, 0x20000
        s_mov_b32 s50, {448 * 8192}
        s_mov_b32 s51, 0x20000
        v_lshrrev_b32 v3, 3, v0
        v_and_b32 v4, 7, v0
        v_lshlrev_b32 v5, 4, v4
        v_lshl_or_b32 v5, v3, 13, v5
        v_min_u32 v4, 6, v4
        v_lshl_add_u32 v4, v4, 3, v3
        v_add_u32 v4, s58, v4
        v_lshlrev_b32 v6, 1, v4
        v_lshlrev_b32 v7, 3, v4
        v_lshlrev_b32 v8, 4, v0
        s_waitcnt lgkmcnt(0)
        s_barrier
        ''')
        self.stamp(1)
        self(f'''
        s_mov_b64 s[44:45], s[4:5]
        s_mov_b64 s[48:49], s[10:11]
        buffer_load_dwordx4 v[12:15], v8, s[44:47], 0 offen
        buffer_load_ushort v9, v6, s[44:47], 0 offen
        s_load_dword s34, s[30:31], 0
        ''')
        for t in range(7):
            self(f'buffer_load_dwordx4 v[{W+4*t}:{W+4*t+3}], v5, s[48:51], s59 offen nt')
            if t < 6:
                self('s_add_u32 s59, s59, 65536')
        self('s_mov_b64 s[40:41], s[30:31]')
        self.masks(M, 1, 60)
        self.colmap(10, 1)
        self(f'''
        v_lshlrev_b32 v10, 3, v10
        s_lshl_b32 s65, s32, 1
        s_add_u32 s65, s65, s57
        s_lshl_b32 s65, s65, 3
        s_add_u32 s65, s65, s56
        s_lshl_b32 s65, s65, 9
        s_add_u32 s65, s65, {QP}
        s_lshl_b32 s56, s3, 8
        v_lshl_add_u32 v11, v0, 2, s56
        v_lshlrev_b32 v3, 2, v0
        s_mov_b32 s62, {C_I448}
        s_mov_b32 s63, 0xffff0000
        s_mov_b32 s64, {C_EPS}
        s_movk_i32 s66, {MODA}
        s_movk_i32 s67, {MODA + 7168}
        s_waitcnt vmcnt(7)
        ''')
        for k in range(4):
            self(f'v_lshlrev_b32 v{64+2*k}, 16, v{12+k}')
            self(f'v_and_b32 v{65+2*k}, s63, v{12+k}')
        self('''
        v_lshlrev_b32 v9, 16, v9
        v_add_f32 v12, v64, v65
        v_mul_f32 v13, v64, v64
        ''')
        for k in range(1, 8):
            if k >= 2:
                self(f'v_add_f32 v12, v12, v{64+k}')
            self(f'v_fmac_f32 v13, v{64+k}, v{64+k}')
        self.wave_sum2(12, 13)
        self('''
        v_readlane_b32 s60, v12, 63
        v_readlane_b32 s61, v13, 63
        v_mov_b32 v12, s60
        v_mov_b32 v13, s61
        ''')
        self.ln_tail('v12', 'v13', 9, 9, 14)
        self('s_waitcnt lgkmcnt(0)')
        self.tagregs()
        self.stamp(2)
        L = self.poll_begin('pa')
        self(f'''
        buffer_load_dwordx2 v[64:65], v7, s[40:43], s66 offen sc1
        buffer_load_dwordx2 v[66:67], v7, s[40:43], s66 offen offset:3584 sc1
        buffer_load_dwordx2 v[68:69], v7, s[40:43], s67 offen sc1
        buffer_load_dwordx2 v[70:71], v7, s[40:43], s67 offen offset:3584 sc1
        s_waitcnt vmcnt(0)
        v_bitop3_b32 v12, v65, v67, s34 bitop3:0x7e
        v_bitop3_b32 v13, v69, v71, s34 bitop3:0x7e
        v_add_f32 v64, v64, v68
        v_or_b32 v12, v12, v13
        v_add_f32 v66, v66, v70
        v_cmp_ne_u32 vcc, 0, v12
        ''')
        self.poll_end(L)
        self.stamp(3)
        self('''
        v_cvt_pk_bf16_f32 v64, v64, v66
        v_and_b32 v66, s63, v64
        v_add_f32 v66, 1.0, v66
        v_lshlrev_b32 v64, 16, v64
        ''')
        self.rnd(66, 66)
        self('v_mul_f32 v66, v66, v9')
        self.rnd(66, 66)
        self('v_add_f32 v66, v66, v64')
        self.p01(12, 13, 66)
        self.gemv(7, (12, 13), M, A, [W], [D])
        self.red1(14, D)
        self(f'''
        v_mov_b32 v2, 1
        ds_write_b32 v11, v14 offset:{RQ}
        s_mov_b64 exec, 1
        v_mov_b32 v1, {CNT}
        ds_add_rtn_u32 v12, v1, v2
        s_mov_b64 exec, -1
        s_waitcnt lgkmcnt(0)
        v_readfirstlane_b32 s56, v12
        s_cmp_eq_u32 s56, 3
        s_cbranch_scc0 L_fgather
        ds_read2st64_b32 v[12:13], v3 offset0:{RQ // 256} offset1:{RQ // 256 + 1}
        ds_read2st64_b32 v[14:15], v3 offset0:{RQ // 256 + 2} offset1:{RQ // 256 + 3}
        s_waitcnt lgkmcnt(0)
        v_pk_add_f32 v[12:13], v[12:13], v[14:15]
        v_add_f32 v12, v12, v13
        v_mov_b32 v13, s34
        buffer_store_dwordx2 v[12:13], v10, s[40:43], s65 offen sc1
        ''')
        self(f'''
        L_fgather:
        s_lshl_b32 s56, s32, 13
        s_lshl_b32 s57, s3, 10
        s_add_u32 s56, s56, s57
        s_add_u32 s56, s56, {QP}
        s_add_u32 s57, s56, 4096
        v_lshlrev_b32 v8, 4, v0
        s_lshl_b32 s58, s3, 8
        v_lshl_add_u32 v11, v0, 2, s58
        ''')
        self.stamp(4)
        L = self.poll_begin('pq')
        self(f'''
        buffer_load_dwordx4 v[64:67], v8, s[40:43], s56 offen sc1
        buffer_load_dwordx4 v[68:71], v8, s[40:43], s57 offen sc1
        s_waitcnt vmcnt(0)
        v_bitop3_b32 v12, v65, v67, s34 bitop3:0x7e
        v_bitop3_b32 v13, v69, v71, s34 bitop3:0x7e
        v_add_f32 v64, v64, v68
        v_or_b32 v12, v12, v13
        v_add_f32 v66, v66, v70
        v_cmp_ne_u32 vcc, 0, v12
        ''')
        self.poll_end(L)
        self(f'''
        v_cvt_pk_bf16_f32 v64, v64, v66
        ds_write_b32 v11, v64 offset:{QL}
        s_waitcnt lgkmcnt(0)
        ''')
        self.stamp(5)
        self(f'''
        s_barrier
        s_cmp_ge_u32 s33, 14
        s_cbranch_scc1 L_fwo
        s_cmp_eq_u32 s3, 0
        s_cbranch_scc0 L_fend
        s_barrier
        ''')
        self.mlpub()
        self(f'''
        s_branch L_fend
        L_fwo:
        s_cmp_ge_u32 s33, 21
        s_cselect_b32 s57, 1, 0
        s_mul_i32 s58, s57, 7
        s_sub_u32 s58, s33, s58
        s_sub_u32 s58, s58, 14
        s_lshl_b32 s59, s32, 1
        s_add_u32 s59, s59, s57
        s_lshl_b32 s60, s59, 2
        s_add_u32 s60, s60, s3
        s_mul_i32 s60, s60, {64 * 896}
        s_lshl_b32 s61, s58, 7
        s_add_u32 s60, s60, s61
        s_mov_b64 s[48:49], s[12:13]
        s_mov_b32 s50, {4096 * 896}
        s_mov_b32 s51, 0x20000
        ''')
        self.rowvoff(5, 6, 896)
        for t in range(8):
            self(f'buffer_load_dwordx4 v[{W+4*t}:{W+4*t+3}], v5, s[48:51], s60 offen nt')
            if t < 7:
                self('s_add_u32 s60, s60, 3584')
        self.colmap(10, 1)
        self(f'''
        v_and_b32 v1, 3, v10
        v_lshlrev_b32 v1, 3, v1
        v_lshrrev_b32 v9, v1, s34
        v_lshlrev_b32 v10, 2, v10
        s_mul_i32 s65, s59, 1792
        s_lshl_b32 s61, s58, 8
        s_add_u32 s65, s65, s61
        s_add_u32 s65, s65, {YREC}
        v_and_b32 v1, 15, v0
        v_lshrrev_b32 v2, 4, v0
        v_lshlrev_b32 v7, 4, v1
        v_lshl_or_b32 v7, v2, 10, v7
        v_cmp_gt_u32 s[52:53], 7, v1
        v_min_u32 v1, 6, v1
        v_lshl_add_u32 v1, v1, 2, v2
        v_lshlrev_b32 v6, 4, v1
        s_lshl_b32 s66, s59, 9
        s_add_u32 s66, s66, {ML}
        s_lshl_b32 s67, s59, 15
        s_lshl_b32 s61, s3, 8
        s_add_u32 s67, s67, s61
        s_add_u32 s56, s67, {OREC}
        s_add_u32 s57, s56, 4096
        s_add_u32 s58, s56, 8192
        s_add_u32 s59, s56, 12288
        s_add_u32 s60, s56, 16384
        s_add_u32 s61, s56, 20480
        s_add_u32 s62, s56, 24576
        s_mov_b32 s63, {C_SC}
        s_movk_i32 s64, 0xff
        v_lshlrev_b32 v3, 2, v0
        s_barrier
        s_cmp_eq_u32 s3, 0
        s_cbranch_scc1 L_fml
        s_barrier
        s_branch L_fpoll
        L_fml:
        ''')
        self.mlpub()
        self(f'''
        L_fpoll:
        ''')
        self.stamp(6)
        R = 68
        L = self.poll_begin('po')
        self('buffer_load_dwordx4 v[64:67], v6, s[40:43], s66 offen sc1')
        for i in range(7):
            self(f'buffer_load_dwordx4 v[{R+4*i}:{R+4*i+3}], v7, s[40:43], s{56+i} offen sc1')
        self(f'''
        s_waitcnt vmcnt(7)
        v_bitop3_b32 v12, v65, v67, s34 bitop3:0x7e
        v_max_f32_dpp v13, v64, v64 row_ror:8 row_mask:0xf bank_mask:0xf
        v_cmp_ne_u32 s[54:55], 0, v12
        v_max_f32_dpp v13, v13, v13 row_ror:4 row_mask:0xf bank_mask:0xf
        v_max_f32_dpp v13, v13, v13 row_ror:2 row_mask:0xf bank_mask:0xf
        v_max_f32_dpp v13, v13, v13 row_ror:1 row_mask:0xf bank_mask:0xf
        v_mov_b32 v14, v13
        v_permlane16_swap_b32 v13, v14
        v_max_f32 v13, v13, v14
        v_mov_b32 v14, v13
        v_permlane32_swap_b32 v13, v14
        v_max_f32 v13, v13, v14
        v_sub_f32 v13, v64, v13
        v_mul_f32 v13, s63, v13
        v_exp_f32 v13, v13
        s_nop 0
        v_mul_f32 v14, v13, v66
        v_cndmask_b32 v14, 0, v14, s[52:53]
        v_add_f32_dpp v14, v14, v14 row_ror:4 row_mask:0xf bank_mask:0xf
        v_add_f32_dpp v14, v14, v14 row_ror:2 row_mask:0xf bank_mask:0xf
        v_add_f32_dpp v14, v14, v14 row_ror:1 row_mask:0xf bank_mask:0xf
        v_add_f32_dpp v14, v14, v14 row_ror:8 row_mask:0xf bank_mask:0xf
        v_mov_b32 v15, v14
        v_permlane16_swap_b32 v14, v15
        v_add_f32 v14, v14, v15
        v_mov_b32 v15, v14
        v_permlane32_swap_b32 v14, v15
        v_add_f32 v14, v14, v15
        v_rcp_f32 v14, v14
        ''')
        for i in range(7):
            self(f's_waitcnt vmcnt({6 - i})')
            for c in range(4):
                self(f'v_xor_b32 v{R+4*i+c}, s{36+c}, v{R+4*i+c}')
            if i == 0:
                self(f'v_or3_b32 v12, v{R}, v{R+1}, v{R+2}')
                self(f'v_or_b32 v12, v12, v{R+3}')
            else:
                self(f'v_or3_b32 v12, v12, v{R+4*i}, v{R+4*i+1}')
                self(f'v_or3_b32 v12, v12, v{R+4*i+2}, v{R+4*i+3}')
            for c in range(4):
                if i == 0:
                    self(f'v_mul_f32_dpp v{96+c}, v13, v{R+c} row_newbcast:0 row_mask:0xf bank_mask:0xf')
                else:
                    self(f'v_fmac_f32_dpp v{96+c}, v13, v{R+4*i+c} row_newbcast:{i} row_mask:0xf bank_mask:0xf')
        self('''
        v_and_b32 v12, 0xff, v12
        v_cmp_ne_u32 vcc, 0, v12
        s_or_b64 vcc, vcc, s[54:55]
        ''')
        self.poll_end(L)
        self.stamp(7)
        self.x4comb(96, 96)
        self('v_mul_f32 v96, v96, v14')
        self.p01(12, 13, 96)
        self.gemv(8, (12, 13), M, A, [W], [D])
        self.red1(14, D)
        self(f'''
        ds_write_b32 v11, v14 offset:{RY}
        s_waitcnt lgkmcnt(0)
        s_barrier
        s_cmp_eq_u32 s3, 0
        s_cbranch_scc0 L_fend
        ds_read2st64_b32 v[12:13], v3 offset0:{RY // 256} offset1:{RY // 256 + 1}
        ds_read2st64_b32 v[14:15], v3 offset0:{RY // 256 + 2} offset1:{RY // 256 + 3}
        s_waitcnt lgkmcnt(0)
        v_pk_add_f32 v[12:13], v[12:13], v[14:15]
        v_add_f32 v12, v12, v13
        v_bfi_b32 v12, s64, v9, v12
        buffer_store_dword v12, v10, s[40:43], s65 offen sc1
        L_fend:
        ''')
        self.stamp(8)
        self.end()

    def service(self):
        M, A, D, DU = 16, 20, 28, 12
        WA, WB, WG, WU, WD, Y = 32, 48, 80, 112, 144, 176
        self(f'''
        L_service:
        s_mov_b32 s33, s2
        s_cmp_ge_u32 s2, 28
        s_cbranch_scc1 L_end
        s_cmp_ge_u32 s33, 14
        s_cselect_b32 s57, 1, 0
        s_mul_i32 s58, s57, 14
        s_sub_u32 s56, s33, s58
        s_cmp_eq_u32 s3, 7
        s_cbranch_scc1 L_sv7
        s_mul_i32 s58, s57, 224
        s_lshl_b32 s59, s3, 5
        s_add_u32 s58, s58, s59
        s_mul_i32 s65, s58, 5376
        s_lshl_b32 s59, s56, 7
        s_add_u32 s65, s65, s59
        s_movk_i32 s46, 896
        s_mov_b32 s47, 0x20000
        s_mov_b32 s50, {448 * 5376}
        s_mov_b32 s51, 0x20000
        v_lshrrev_b32 v1, 3, v0
        v_and_b32 v2, 3, v0
        v_lshl_add_u32 v2, v2, 3, v1
        v_add_u32 v2, s58, v2
        v_lshlrev_b32 v2, 1, v2
        v_and_b32 v3, 7, v0
        v_lshlrev_b32 v3, 4, v3
        s_movk_i32 s59, 5376
        v_mad_u32_u24 v3, v1, s59, v3
        s_add_u32 s66, s65, {8 * 5376}
        s_add_u32 s67, s65, {16 * 5376}
        s_add_u32 s68, s65, {24 * 5376}
        v_and_b32 v4, 15, v0
        v_lshrrev_b32 v5, 4, v0
        v_lshl_add_u32 v4, v4, 2, v5
        s_lshl_b32 s59, s3, 6
        v_add_u32 v4, s59, v4
        v_lshlrev_b32 v5, 1, v4
        s_mov_b32 s58, {C_LOG2E_N}
        s_mov_b32 s59, {C_LLO_N}
        s_mov_b32 s60, {C_LN2}
        s_mov_b32 s61, 0x42fc0000
        ''')
        self.masks(M, 6)
        self('s_waitcnt lgkmcnt(0)')
        self.stamp(1)
        self(f'''
        s_mov_b64 s[44:45], s[22:23]
        s_mov_b64 s[48:49], s[24:25]
        buffer_load_ushort v6, v2, s[44:47], 0 offen
        buffer_load_dwordx4 v[{WA}:{WA+3}], v3, s[48:51], s65 offen nt
        buffer_load_dwordx4 v[{WA+4}:{WA+7}], v3, s[48:51], s66 offen nt
        buffer_load_dwordx4 v[{WA+8}:{WA+11}], v3, s[48:51], s67 offen nt
        buffer_load_dwordx4 v[{WA+12}:{WA+15}], v3, s[48:51], s68 offen nt
        buffer_load_ushort v7, v5, s[44:47], 0 offen
        s_mov_b64 s[44:45], s[4:5]
        s_load_dword s34, s[30:31], 0
        buffer_load_ushort v8, v5, s[44:47], 0 offen
        s_lshl_b32 s65, s3, 8
        v_lshl_add_u32 v9, v0, 2, s65
        s_mov_b64 s[40:41], s[30:31]
        ''')
        self.srd_ws()
        self('''
        s_waitcnt vmcnt(6)
        v_lshlrev_b32 v6, 16, v6
        ''')
        self.silu_acc(6, 6, 1)
        self.stamp(2)
        self.gemv(4, (6, 6), M, A, [WA], [D], waits={0: 5, 1: 4, 2: 3, 3: 2})
        self.red1(1, D)
        self(f'''
        ds_write_b32 v9, v1 offset:{RA}
        s_waitcnt lgkmcnt(0)
        s_barrier
        ''')
        self.stamp(3)
        self.rowvoff(2, 1, 5376)
        self.rowvoff(3, 1, 3584)
        self.rowvoff(5, 1, 896)
        self(f'''
        s_mul_i32 s65, s3, {64 * 5376}
        s_lshl_b32 s56, s33, 7
        s_add_u32 s65, s65, s56
        s_add_u32 s65, s65, 1792
        s_mul_i32 s66, s3, {64 * 3584}
        s_add_u32 s66, s66, s56
        s_mov_b32 s67, s66
        s_mul_i32 s68, s33, {64 * 896}
        s_lshl_b32 s56, s3, 7
        s_add_u32 s68, s68, s56
        s_mov_b64 s[52:53], s[16:17]
        s_mov_b32 s54, {448 * 3584}
        s_mov_b32 s55, 0x20000
        s_barrier
        ''')
        for t in range(8):
            self(f'buffer_load_dwordx4 v[{WB+4*t}:{WB+4*t+3}], v2, s[48:51], s65 offen nt')
            if t < 7:
                self(f's_add_u32 s65, s65, {4 * 5376}')
        for t in range(8):
            self(f'buffer_load_dwordx4 v[{WG+4*t}:{WG+4*t+3}], v3, s[52:55], s66 offen nt')
            if t < 7:
                self(f's_add_u32 s66, s66, {4 * 3584}')
        self('''
        s_waitcnt vmcnt(16)
        v_lshlrev_b32 v7, 16, v7
        v_lshlrev_b32 v8, 16, v8
        ''')
        self.silu_acc(7, 7, 32)
        self('v_mov_b32 v6, v7')
        self.p01b(6, 7)
        self.gemv(8, (6, 7), M, A, [WB], [D], waits={0: 8})
        self.red1(1, D)
        self(f'''
        ds_write_b32 v9, v1 offset:{RB}
        s_mov_b64 s[52:53], s[18:19]
        s_mov_b64 s[48:49], s[20:21]
        s_mov_b32 s50, {1792 * 896}
        s_waitcnt lgkmcnt(0)
        s_barrier
        ''')
        self.stamp(4)
        for t in range(8):
            self(f'buffer_load_dwordx4 v[{WU+4*t}:{WU+4*t+3}], v3, s[52:55], s67 offen nt')
            if t < 7:
                self(f's_add_u32 s67, s67, {4 * 3584}')
        for t in range(8):
            self(f'buffer_load_dwordx4 v[{WD+4*t}:{WD+4*t+3}], v5, s[48:51], s68 offen nt')
            if t < 7:
                self(f's_add_u32 s68, s68, {4 * 896}')
        self.tagregs()
        self.colmap(10, 1)
        self(f'''
        v_and_b32 v1, 3, v10
        v_lshlrev_b32 v1, 3, v1
        v_lshrrev_b32 v11, v1, s34
        v_lshlrev_b32 v10, 2, v10
        v_lshlrev_b32 v2, 3, v4
        v_lshlrev_b32 v6, 2, v4
        v_and_b32 v9, 0xff, v6
        v_and_b32 v1, 15, v0
        v_lshlrev_b32 v1, 4, v1
        v_lshrrev_b32 v3, 4, v0
        s_movk_i32 s56, 1792
        v_mad_u32_u24 v3, v3, s56, v1
        s_lshl_b32 s56, s3, 3
        s_add_u32 s56, s56, {ST}
        v_mov_b32 v1, s56
        v_lshlrev_b32 v5, 3, v0
        v_add_u32 v5, {DUM}, v5
        v_cmp_eq_u32 vcc, 63, v0
        v_cndmask_b32 v5, v5, v1, vcc
        v_and_b32 v7, 7, v0
        v_lshlrev_b32 v7, 5, v7
        v_bfe_u32 v1, v0, 4, 1
        v_lshl_or_b32 v7, v1, 4, v7
        v_lshrrev_b32 v1, 5, v0
        v_lshl_or_b32 v7, v1, 8, v7
        s_lshl_b32 s56, s3, 9
        v_add_u32 v7, s56, v7
        s_lshl_b32 s56, s3, 8
        s_add_u32 s65, s56, {YREC}
        s_add_u32 s66, s65, {4 * 1792}
        s_add_u32 s67, s65, {8 * 1792}
        s_add_u32 s68, s65, {12 * 1792}
        s_mul_i32 s69, s33, 1792
        s_add_u32 s69, s69, s56
        s_add_u32 s69, s69, {FREC}
        s_mov_b32 s56, {MODB}
        s_mov_b32 s57, {MODB + 7168}
        s_mov_b32 s62, {C_I448}
        s_mov_b32 s63, 0xffff0000
        s_mov_b32 s64, {C_EPS}
        s_movk_i32 s59, 0xff
        ''')
        L = self.poll_begin('pb')
        self(f'''
        buffer_load_dwordx2 v[32:33], v2, s[40:43], s56 offen sc1
        buffer_load_dwordx2 v[34:35], v2, s[40:43], s56 offen offset:3584 sc1
        buffer_load_dwordx2 v[36:37], v2, s[40:43], s57 offen sc1
        s_waitcnt vmcnt(0)
        v_bitop3_b32 v1, v33, v35, s34 bitop3:0x7e
        v_xor_b32 v37, s34, v37
        v_or_b32 v1, v1, v37
        v_cmp_ne_u32 vcc, 0, v1
        ''')
        self.poll_end(L)
        self('v_add_f32 v36, 1.0, v36')
        self.rnd(36, 36)
        self.stamp(5)
        L = self.poll_begin('py')
        for i in range(4):
            self(f'buffer_load_dwordx4 v[{Y+4*i}:{Y+4*i+3}], v3, s[40:43], s{65+i} offen sc1')
        for i in range(4):
            self(f's_waitcnt vmcnt({3 - i})')
            for c in range(4):
                self(f'v_xor_b32 v{Y+4*i+c}, s{36+c}, v{Y+4*i+c}')
            if i == 0:
                self(f'v_or3_b32 v1, v{Y}, v{Y+1}, v{Y+2}')
                self(f'v_or_b32 v1, v1, v{Y+3}')
            else:
                self(f'v_or3_b32 v1, v1, v{Y+4*i}, v{Y+4*i+1}')
                self(f'v_or3_b32 v1, v1, v{Y+4*i+2}, v{Y+4*i+3}')
                self(f'v_pk_add_f32 v[{Y}:{Y+1}], v[{Y}:{Y+1}], v[{Y+4*i}:{Y+4*i+1}]')
                self(f'v_pk_add_f32 v[{Y+2}:{Y+3}], v[{Y+2}:{Y+3}], v[{Y+4*i+2}:{Y+4*i+3}]')
        self('''
        v_and_b32 v1, 0xff, v1
        v_cmp_ne_u32 vcc, 0, v1
        ''')
        self.poll_end(L)
        self.stamp(6)
        self.x4comb(1, Y)
        self.rnd(1, 1)
        self('v_mul_f32 v1, v1, v32')
        self.rnd(1, 1)
        self('v_add_f32 v1, v1, v8')
        self.rnd(8, 1)
        self(f'''
        v_mul_f32 v39, v8, v8
        v_mov_b32 v38, v8
        ds_write_b32 v6, v8 offset:{X2}
        ''')
        self.wave_sum2(38, 39)
        self(f'''
        ds_write_b64 v5, v[38:39]
        v_mov_b32 v1, 0
        s_waitcnt lgkmcnt(0)
        s_barrier
        ds_read_b128 v[40:43], v1 offset:{ST}
        ds_read_b128 v[44:47], v1 offset:{ST + 16}
        ds_read_b128 v[48:51], v1 offset:{ST + 32}
        ds_read_b64 v[52:53], v1 offset:{ST + 48}
        s_waitcnt lgkmcnt(2)
        v_pk_add_f32 v[40:41], v[40:41], v[42:43]
        v_pk_add_f32 v[44:45], v[44:45], v[46:47]
        s_waitcnt lgkmcnt(0)
        v_pk_add_f32 v[48:49], v[48:49], v[50:51]
        v_pk_add_f32 v[40:41], v[40:41], v[44:45]
        v_pk_add_f32 v[48:49], v[48:49], v[52:53]
        v_pk_add_f32 v[40:41], v[40:41], v[48:49]
        ''')
        self.ln_tail('v40', 'v41', 8, 1, 42)
        self('v_mul_f32 v1, v1, v36')
        self.rnd(1, 1)
        self('v_add_f32 v1, v1, v34')
        self.p01(38, 39, 1)
        self.gemv(8, (38, 39), M, A, [WG, WU], [D, DU])
        for r in range(4):
            self(f'v_permlane32_swap_b32 v{D+r}, v{DU+r}')
        for r in range(4):
            self(f'v_add_f32_dpp v{D+r}, v{DU+r}, v{D+r} row_ror:8 row_mask:0xf bank_mask:0xf')
        self(f'''
        s_mov_b32 exec_lo, 0x00ff00ff
        s_mov_b32 exec_hi, 0x00ff00ff
        ds_write_b128 v7, v[{D}:{D+3}] offset:{GU}
        s_mov_b64 exec, -1
        s_waitcnt lgkmcnt(0)
        s_barrier
        ''')
        for w in range(7):
            self(f'ds_read2st64_b32 v[{40+2*w}:{41+2*w}], v9 offset0:{GU // 256 + 2 * w} offset1:{GU // 256 + 2 * w + 1}')
        self(f'''
        s_waitcnt lgkmcnt(5)
        v_pk_add_f32 v[40:41], v[40:41], v[42:43]
        s_waitcnt lgkmcnt(3)
        v_pk_add_f32 v[44:45], v[44:45], v[46:47]
        s_waitcnt lgkmcnt(1)
        v_pk_add_f32 v[48:49], v[48:49], v[50:51]
        v_pk_add_f32 v[40:41], v[40:41], v[44:45]
        s_waitcnt lgkmcnt(0)
        v_pk_add_f32 v[48:49], v[48:49], v[52:53]
        v_pk_add_f32 v[40:41], v[40:41], v[48:49]
        v_cvt_pk_bf16_f32 v41, v40, v41
        v_lshlrev_b32 v40, 16, v41
        v_mul_f32 v42, s58, v40
        v_exp_f32 v42, v42
        v_and_b32 v41, s63, v41
        v_add_f32 v42, 1.0, v42
        v_rcp_f32 v42, v42
        s_nop 0
        v_mul_f32 v40, v40, v42
        ''')
        self.rnd(40, 40)
        self('v_mul_f32 v40, v40, v41')
        self.p01(38, 39, 40)
        self.gemv(8, (38, 39), M, A, [WD], [D])
        self.red1(1, D)
        self(f'''
        v_bfi_b32 v1, s59, v11, v1
        buffer_store_dword v1, v10, s[40:43], s69 offen sc1
        ''')
        self.stamp(7)
        self.end()
        self('L_sv7:')
        self.prefetch_code(4)
        self.colmap(10, 1)
        self(f'''
        v_lshlrev_b32 v10, 3, v10
        v_lshlrev_b32 v9, 2, v0
        s_mul_i32 s65, s57, 7168
        s_lshl_b32 s56, s56, 9
        s_add_u32 s65, s65, s56
        s_add_u32 s65, s65, {MODA}
        s_lshl_b32 s66, s33, 9
        s_add_u32 s66, s66, {MODB}
        s_waitcnt lgkmcnt(0)
        s_load_dword s34, s[30:31], 0
        s_mov_b64 s[40:41], s[30:31]
        ''')
        self.srd_ws()
        self(f'''
        s_mov_b64 s[44:45], s[26:27]
        s_movk_i32 s46, 896
        s_mov_b32 s47, 0x20000
        s_waitcnt lgkmcnt(0)
        ''')
        self.tagregs()
        self('v_mov_b32 v21, s34')

        def red7(base):
            b = base // 256
            self(f'''
            ds_read2st64_b32 v[12:13], v9 offset0:{b} offset1:{b+1}
            ds_read2st64_b32 v[14:15], v9 offset0:{b+2} offset1:{b+3}
            ds_read2st64_b32 v[16:17], v9 offset0:{b+4} offset1:{b+5}
            ds_read_b32 v18, v9 offset:{base + 1536}
            s_waitcnt lgkmcnt(2)
            v_pk_add_f32 v[12:13], v[12:13], v[14:15]
            s_waitcnt lgkmcnt(0)
            v_add_f32 v16, v16, v18
            v_pk_add_f32 v[12:13], v[12:13], v[16:17]
            v_add_f32 v20, v12, v13
            ''')
        self('s_barrier')
        red7(RA)
        self('buffer_store_dwordx2 v[20:21], v10, s[40:43], s65 offen sc1')
        self.stamp(3)
        self(f'''
        s_barrier
        v_and_b32 v1, 3, v0
        v_lshrrev_b32 v2, 4, v0
        v_lshl_add_u32 v2, v1, 2, v2
        s_lshl_b32 s56, s33, 4
        v_add_u32 v2, s56, v2
        v_lshlrev_b32 v3, 3, v2
        v_lshlrev_b32 v4, 2, v2
        v_lshlrev_b32 v5, 1, v2
        v_lshrrev_b32 v6, 2, v0
        v_lshlrev_b32 v1, 4, v1
        s_movk_i32 s57, 1792
        v_mad_u32_u24 v6, v6, s57, v1
        s_lshl_b32 s67, s33, 6
        s_add_u32 s67, s67, {FREC}
        s_add_u32 s68, s67, {16 * 1792}
        s_mov_b32 s69, {MODB + 3 * 3584}
        v_mov_b32 v36, s36
        v_mov_b32 v37, s37
        v_mov_b32 v38, s38
        v_mov_b32 v39, s39
        s_barrier
        ''')
        red7(RB)
        self.rnd(20, 20)
        self('buffer_store_dwordx2 v[20:21], v10, s[40:43], s66 offen sc1')
        self.stamp(4)
        L = self.poll_begin('pg')
        self(f'''
        buffer_load_dwordx2 v[22:23], v3, s[40:43], s69 offen sc1
        s_waitcnt vmcnt(0)
        v_cmp_ne_u32 vcc, s34, v23
        ''')
        self.poll_end(L)
        self.stamp(5)
        self(f'''
        s_barrier
        ds_read_b32 v24, v4 offset:{X2}
        s_barrier
        ''')
        self.stamp(6)
        L = self.poll_begin('pf')
        self(f'''
        buffer_load_dwordx4 v[32:35], v6, s[40:43], s67 offen sc1
        s_mov_b32 exec_hi, 0xffff
        buffer_load_dwordx4 v[36:39], v6, s[40:43], s68 offen sc1
        s_mov_b32 exec_hi, -1
        s_waitcnt vmcnt(1)
        ''')
        for c in range(4):
            self(f'v_xor_b32 v{32+c}, s{36+c}, v{32+c}')
        self('s_waitcnt vmcnt(0)')
        for c in range(4):
            self(f'v_xor_b32 v{40+c}, s{36+c}, v{36+c}')
        self('''
        v_or3_b32 v1, v32, v33, v34
        v_or3_b32 v2, v35, v40, v41
        v_pk_add_f32 v[32:33], v[32:33], v[40:41]
        v_or3_b32 v1, v1, v42, v43
        v_pk_add_f32 v[34:35], v[34:35], v[42:43]
        v_or_b32 v1, v1, v2
        v_and_b32 v1, 0xff, v1
        v_cmp_ne_u32 vcc, 0, v1
        ''')
        self.poll_end(L)
        self.stamp(7)
        self.x4comb(1, 32)
        self('''
        v_add_f32_dpp v1, v1, v1 row_ror:8 row_mask:0xf bank_mask:0xf
        v_add_f32_dpp v1, v1, v1 row_ror:4 row_mask:0xf bank_mask:0xf
        ''')
        self.rnd(1, 1)
        self('v_mul_f32 v1, v1, v22')
        self.rnd(1, 1)
        self('''
        s_waitcnt lgkmcnt(0)
        v_add_f32 v1, v1, v24
        v_cvt_pk_bf16_f32 v1, v1, v1
        s_mov_b32 exec_lo, 0x000f000f
        s_mov_b32 exec_hi, 0x000f000f
        buffer_store_short v1, v5, s[44:47], 0 offen
        s_cmp_eq_u32 s33, 0
        s_cbranch_scc0 L_s7end
        s_mov_b64 exec, 1
        v_mov_b32 v2, 0
        buffer_store_dword v21, v2, s[40:43], 0 offen sc1
        L_s7end:
        ''')
        self.stamp(8)
        self.end()

    def epilogue(self):
        if self.dev:
            n = 12
            self('L_dump:')
            self(f'''
            s_waitcnt vmcnt(0) lgkmcnt(0)
            s_memrealtime s[92:93]
            s_add_u32 s60, s30, {STAMP_OFF}
            s_addc_u32 s61, s31, 0
            s_mov_b32 s62, 0x100000
            s_mov_b32 s63, 0x20000
            s_lshl_b32 s64, s2, 4
            s_add_u32 s64, s64, s3
            s_lshl_b32 s64, s64, 7
            s_mov_b64 exec, 1
            v_mov_b32 v2, s64
            s_waitcnt lgkmcnt(0)
            ''')
            for i in range(n):
                self(f'''
                v_mov_b32 v0, s{70+2*i}
                v_mov_b32 v1, s{71+2*i}
                buffer_store_dwordx2 v[0:1], v2, s[60:63], 0 offen offset:{8*i}
                s_nop 1
                ''')
        self('''
        L_end:
        s_endpgm
        L_code_end:
        ''')


def build(dev=False, opt=None):
    g = G(dev, opt)
    g.prologue()
    g.stream()
    g.front()
    g.service()
    g.epilogue()
    body, npad = hazard.pad(g.a.l)
    ref = open('adaLN_cond__sliding_block_cached__swiglu_ffn__decode.s.ref').read().split('\n') \
        if os.path.exists('adaLN_cond__sliding_block_cached__swiglu_ffn__decode.s.ref') else []
    head = []
    for l in ref:
        if l.startswith('; @launch'):
            break
        head.append(l)
    out = head + [f'; @launch grid=(256,1,1) block=(512,1,1) lds={LDS_SIZE}',
                  '.amdgcn_target "amdgcn-amd-amdhsa--gfx950"', '.text', f'.globl {KN}', '.p2align 8',
                  f'.type {KN},@function', f'{KN}:']
    for l in body:
        out.append(l if l.endswith(':') else '    ' + l)
    out += ['.section .rodata,"a"', '.p2align 6', f'.amdhsa_kernel {KN}', '  .amdhsa_next_free_vgpr 240',
            '  .amdhsa_next_free_sgpr 102', '  .amdhsa_accum_offset 240', '  .amdhsa_group_segment_fixed_size 0',
            '  .amdhsa_kernarg_size 112', '  .amdhsa_user_sgpr_count 2', '  .amdhsa_user_sgpr_kernarg_segment_ptr 1',
            '  .amdhsa_system_sgpr_workgroup_id_x 1', '  .amdhsa_float_denorm_mode_32 3', '.end_amdhsa_kernel']
    return '\n'.join(out) + '\n', npad


if __name__ == '__main__':
    here = os.path.dirname(os.path.abspath(__file__))
    t, n = build(dev=True)
    open(os.path.join(here, 'k_dev.s'), 'w').write(t)
    t, n2 = build(dev=False)
    open(os.path.join(here, 'k_fin.s'), 'w').write(t)
    print('pads', n, n2)
```
